```python
import torch

def _softmax(x, axis=-1):
    return torch.softmax(x, dim=axis)

def _gelu(x):
    return torch.nn.functional.gelu(x, approximate='tanh')

def _silu(x):
    return torch.nn.functional.silu(x)

def _sigmoid(x):
    return torch.sigmoid(x)

def _layernorm(x, axis=-1, eps=1e-05):
    m = x.mean(dim=axis, keepdim=True)
    v = x.var(dim=axis, keepdim=True, unbiased=False)
    return (x - m) / torch.sqrt(v + eps)

def _scatter_add(tgt, idx, src, axis=0):
    return tgt.clone().index_add_(axis, idx, src)

def _segment_sum(src, seg, n):
    out = torch.zeros((n,) + src.shape[1:], dtype=src.dtype)
    return out.index_add_(0, seg, src)

def _pad(x, pw):
    flat = tuple((v for pair in reversed(pw) for v in pair))
    return torch.nn.functional.pad(x, flat)
kernel_name = 'adaLN_cond__grouped_kv_mqa__geglu_ffn__prompt'

def setup_inputs():

    _w = lambda a: (lambda t: t.to(torch.bfloat16) if t.is_floating_point() else t)(torch.as_tensor(a))

    def _A_setup():
        B, S, D, H = (1, 2048, 512, 32)
        Dh = D // H
        return {'x': _w((lambda *s: torch.randn(*s, dtype=torch.bfloat16) * 0.05)(B, S, D)), 'wq': _w((lambda *s: torch.randn(*s, dtype=torch.bfloat16) * 0.1)(D, H * Dh)), 'wk': _w((lambda *s: torch.randn(*s, dtype=torch.bfloat16) * 0.1)(D, Dh)), 'wv': _w((lambda *s: torch.randn(*s, dtype=torch.bfloat16) * 0.05)(D, Dh)), 'wo': _w((lambda *s: torch.randn(*s, dtype=torch.bfloat16) * 0.05)(H * Dh, D))}
    _A_in = _A_setup()

    def _B_setup():
        B, S, D, F = (1, 2048, 512, 1792)
        return {'x': _w((lambda *s: torch.randn(*s, dtype=torch.bfloat16) * 0.05)(B, S, D)), 'w_gate': _w((lambda *s: torch.randn(*s, dtype=torch.bfloat16) * 0.05)(D, F)), 'w_up': _w((lambda *s: torch.randn(*s, dtype=torch.bfloat16) * 0.05)(D, F)), 'w_down': _w((lambda *s: torch.randn(*s, dtype=torch.bfloat16) * 0.05)(F, D))}
    _B_in = _B_setup()
    return {'A_x': _A_in['x'], 'A_wq': _A_in['wq'], 'A_wk': _A_in['wk'], 'A_wv': _A_in['wv'], 'A_wo': _A_in['wo'], 'B_x': _B_in['x'], 'B_w_gate': _B_in['w_gate'], 'B_w_up': _B_in['w_up'], 'B_w_down': _B_in['w_down'], 'c': _w((lambda *s: torch.randn(*s, dtype=torch.bfloat16) * 0.1)(1, 512) * 8.0), 'w_mod': _w((lambda *s: torch.randn(*s, dtype=torch.bfloat16) * 0.1)(512, 6 * 512) * 512 ** (-0.5) * 8.0)}

def reference(A_x, A_wq, A_wk, A_wv, A_wo, B_x, B_w_gate, B_w_up, B_w_down, c, w_mod):

    def _A_ref(x, wq, wk, wv, wo):
        B, S, D = x.shape
        H = 32
        Dh = D // H
        q = (lambda x, *d: x.permute(*d))((x @ wq).reshape(B, S, H, Dh), 0, 2, 1, 3)
        k = x @ wk
        v = x @ wv
        scores = torch.einsum('bhqd,bkd->bhqk', q, k) * Dh ** (-0.5)
        p = _softmax(scores, axis=-1)
        o = torch.einsum('bhqk,bkd->bhqd', p, v)
        return (lambda x, *d: x.permute(*d))(o, 0, 2, 1, 3).reshape(B, S, H * Dh) @ wo

    def _B_ref(x, w_gate, w_up, w_down):
        return _gelu(x @ w_gate) * (x @ w_up) @ w_down
    x = A_x
    mod = (_silu(c) @ w_mod).reshape(c.shape[0], 6, 1, -1)
    sa, ca, ga, sb, cb, gb = (mod[:, 0].clone(), mod[:, 1].clone(), mod[:, 2].clone(), mod[:, 3].clone(), mod[:, 4].clone(), mod[:, 5].clone())
    h = _layernorm(x, axis=-1) * (1 + ca) + sa
    x = x + ga * _A_ref(h, A_wq, A_wk, A_wv, A_wo)
    h = _layernorm(x, axis=-1) * (1 + cb) + sb
    x = x + gb * _B_ref(h, B_w_gate, B_w_up, B_w_down)
    return x
```

```python
import re

TRANS = ("v_exp_f32", "v_log_f32", "v_rcp_f32", "v_rsq_f32", "v_sqrt_f32", "v_sin_f32", "v_cos_f32",
         "v_exp_f16", "v_rcp_f16", "v_rcp_iflag_f32")

def split_ops(s):
    out, depth, cur = [], 0, ""
    for ch in s:
        if ch == "[":
            depth += 1
        elif ch == "]":
            depth -= 1
        if ch == "," and depth == 0:
            out.append(cur.strip()); cur = ""
        else:
            cur += ch
    if cur.strip():
        out.append(cur.strip())
    return out

REG = re.compile(r"^-?(?:abs\()?\|?([vsa])(?:(\d+)|\[(\d+):(\d+)\])")

def regs(op):
    tok = op.split()[0] if op.split() else ""
    if tok.startswith("vcc"):
        return {("s", "vcc")}
    if tok == "exec":
        return {("s", "exec")}
    if tok == "m0":
        return {("s", "m0")}
    m = REG.match(tok)
    if not m:
        return set()
    k = m.group(1)
    if m.group(2) is not None:
        return {(k, int(m.group(2)))}
    return {(k, i) for i in range(int(m.group(3)), int(m.group(4)) + 1)}

class Ins:
    def __init__(self, text):
        self.text = text
        t = text.split(";")[0].strip()
        self.label = None
        self.mn = ""
        self.ops = []
        if t.endswith(":"):
            self.label = t[:-1]
            self.kind = "label"
            return
        if not t or t.startswith("."):
            self.kind = "dir"
            return
        parts = t.split(None, 1)
        mn = parts[0]
        self.mn = mn
        rest = parts[1] if len(parts) > 1 else ""
        self.rest = rest
        ops = split_ops(rest)
        self.ops = ops
        self.wr, self.rd = set(), set()
        self.passes = 0
        self.srcC = set(); self.srcAB = set()
        self.dpp = False
        if mn.startswith("v_mfma") or mn.startswith("v_smfmac"):
            self.kind = "mfma"
            self.passes = 8 if "32x32" in mn else 4
            self.wr = regs(ops[0])
            self.srcAB = regs(ops[1]) | regs(ops[2])
            if mn.startswith("v_smfmac"):
                self.srcAB |= regs(ops[3])
                self.srcC = regs(ops[0])
            else:
                self.srcC = regs(ops[3])
            self.rd = self.srcAB | self.srcC
        elif mn.startswith("v_"):
            self.kind = "valu"
            base = mn.replace("_e32", "").replace("_e64", "").replace("_dpp", "").replace("_sdwa", "")
            self.base = base
            self.dpp = "_dpp" in mn or "quad_perm" in rest or "row_" in rest
            if base.startswith("v_permlane") and "swap" in base:
                self.wr = regs(ops[0]) | regs(ops[1]); self.rd = set(self.wr)
            elif base in ("v_add_co_u32", "v_sub_co_u32", "v_addc_co_u32", "v_subb_co_u32"):
                self.wr = regs(ops[0]) | regs(ops[1])
                for o in ops[2:]: self.rd |= regs(o)
            elif base == "v_nop":
                pass
            else:
                self.wr = regs(ops[0])
                for o in ops[1:]: self.rd |= regs(o)
                if base in ("v_fmac_f32", "v_dot2c_f32_bf16", "v_writelane_b32", "v_pk_fmac_f16") or self.dpp:
                    self.rd |= regs(ops[0])
                if base == "v_cndmask_b32" and len(ops) == 3:
                    self.rd |= {("s", "vcc")}
        elif mn.startswith("buffer_") or mn.startswith("global_") or mn.startswith("flat_"):
            self.kind = "vmem"
            self.lds = bool(re.search(r"\blds\b", rest)) or "_lds_" in mn
            self.store = "store" in mn or "atomic" in mn
            self.wide = "x4" in mn or "x3" in mn
            self.data = set()
            if mn in ("buffer_inv", "buffer_wbl2"):
                pass
            elif mn.startswith("buffer_"):
                if self.lds:
                    for o in ops: self.rd |= regs(o)
                    self.rd |= {("s", "m0")}
                elif self.store:
                    self.data = regs(ops[0])
                    for o in ops: self.rd |= regs(o)
                    if "atomic" in mn and "sc0" in rest: self.wr = regs(ops[0])
                else:
                    self.wr = regs(ops[0])
                    for o in ops[1:]: self.rd |= regs(o)
            else:
                if self.lds:
                    for o in ops: self.rd |= regs(o)
                    self.rd |= {("s", "m0")}
                elif self.store:
                    self.data = regs(ops[1])
                    for o in ops: self.rd |= regs(o)
                else:
                    self.wr = regs(ops[0])
                    for o in ops[1:]: self.rd |= regs(o)
        elif mn.startswith("ds_"):
            self.kind = "ds"
            if "read" in mn or "permute" in mn or "swizzle" in mn:
                self.wr = regs(ops[0])
                for o in ops[1:]: self.rd |= regs(o)
            else:
                for o in ops: self.rd |= regs(o)
        elif mn.startswith("s_"):
            self.kind = "salu"
            if mn in ("s_nop", "s_waitcnt", "s_barrier", "s_endpgm", "s_setprio", "s_sleep") or mn.startswith("s_cbranch") or mn == "s_branch" or mn.startswith("s_cmp"):
                for o in ops: self.rd |= regs(o)
            else:
                self.wr = regs(ops[0]) if ops else set()
                for o in ops[1:]: self.rd |= regs(o)
                if "saveexec" in mn:
                    self.wr |= {("s", "exec")}
        else:
            raise ValueError("unknown instruction: " + text)

    def states(self):
        if self.kind in ("label", "dir"):
            return 0
        if self.mn == "s_nop":
            return int(self.ops[0], 0) + 1
        return 1

def need(p, c):
    n = 0
    if p.kind == "valu":
        vw = {r for r in p.wr if r[0] in "va"}
        sw = {r for r in p.wr if r[0] == "s"}
        isdot = p.base.startswith("v_dot")
        if c.kind == "mfma" and vw & c.rd:
            n = max(n, 3 if isdot else 2)
        if c.kind == "valu":
            if vw & c.rd:
                if p.base in TRANS and c.base not in TRANS: n = max(n, 1)
                if c.dpp: n = max(n, 2)
                if c.base.startswith("v_permlane"): n = max(n, 2)
                if c.base in ("v_readlane_b32", "v_readfirstlane_b32"): n = max(n, 1)
            if isdot and vw & (c.rd | c.wr):
                if c.base == p.base:
                    ab = regs(c.ops[1]) | regs(c.ops[2])
                    if vw & ab: n = max(n, 3)
                else:
                    n = max(n, 3)
            if sw & c.rd:
                n = max(n, 2)
                if c.base in ("v_readlane_b32", "v_writelane_b32") and sw & regs(c.ops[2]): n = max(n, 4)
            if ("s", "exec") in sw: n = max(n, 5)
        if isdot and c.kind in ("vmem", "ds") and vw & c.rd:
            n = max(n, 3)
        if p.base in TRANS and c.kind in ("vmem", "ds") and vw & c.rd:
            n = max(n, 1)
        if c.kind == "vmem" and sw & c.rd:
            n = max(n, 5)
        if c.kind == "salu" and sw & c.rd:
            n = max(n, 1)
    elif p.kind == "mfma":
        lat = {4: 8, 8: 12}[p.passes]
        if c.kind == "mfma":
            if p.wr & c.srcAB: n = max(n, lat)
            if p.wr & c.srcC:
                if not (p.wr == c.srcC and p.passes == c.passes):
                    n = max(n, lat - 2)
            elif p.wr & c.wr:
                n = max(n, lat - 2)
        elif c.kind in ("valu", "vmem", "ds"):
            if p.wr & (c.rd | c.wr): n = max(n, lat)
            if c.kind == "valu" and p.srcC & c.wr: n = max(n, {4: 3, 8: 7}[p.passes])
    elif p.kind == "salu":
        if ("s", "m0") in p.wr and c.kind == "vmem" and c.lds: n = max(n, 1)
    elif p.kind == "vmem":
        if p.store and p.wide and p.data & c.wr:
            n = max(n, 2 if c.kind in ("valu", "mfma") else 1)
    return n

class Prog:
    def __init__(self):
        self.lines = []
    def __call__(self, text):
        for ln in text.strip("\n").split("\n"):
            ln = ln.rstrip()
            if ln.strip():
                self.lines.append(ln.strip())
    def label(self, name):
        self.lines.append(name + ":")
    def finalize(self):
        ins = [Ins(l) for l in self.lines]
        out = []
        W = 24
        for c in ins:
            if c.kind in ("label", "dir"):
                out.append(c); continue
            req = 0
            dist = 0
            for p in reversed(out):
                if p.kind in ("label", "dir"): continue
                if p.mn in ("s_endpgm", "s_branch"): break
                nd = need(p, c)
                if nd > dist: req = max(req, nd - dist)
                dist += p.states()
                if dist >= W: break
            while req > 0:
                k = min(req, 16)
                out.append(Ins(f"s_nop {k-1}"))
                req -= k
            out.append(c)
        lab = {x.label: i for i, x in enumerate(out) if x.kind == "label"}
        for i, b in enumerate(out):
            if b.kind == "salu" and (b.mn.startswith("s_cbranch") or b.mn == "s_branch"):
                tgt = lab[b.ops[0]]
                pre = [x for x in out[max(0, i - 40): i + 1] if x.kind not in ("label", "dir")]
                for j in range(len(pre) - 2, -1, -1):
                    if pre[j].mn in ("s_endpgm", "s_branch"):
                        pre = pre[j + 1:]; break
                post = []
                for x in out[tgt: tgt + 40]:
                    if x.kind in ("label", "dir"): continue
                    post.append(x)
                    if x.mn in ("s_endpgm", "s_branch"): break
                for ci, c in enumerate(post):
                    dist = sum(x.states() for x in post[:ci])
                    for p in reversed(pre):
                        nd = need(p, c)
                        if nd > dist:
                            raise RuntimeError(f"hazard across branch {b.text}: {p.text} -> {c.text} needs {nd} has {dist}")
                        dist += p.states()
                        if dist >= W: break
        txt = []
        for x in out:
            txt.append(x.text if x.kind == "label" else "    " + x.text)
        return "\n".join(txt) + "\n"

def max_regs(text):
    mv, ms = 0, 0
    for m in re.finditer(r"\bv(\d+)\b|\bv\[(\d+):(\d+)\]", text):
        mv = max(mv, int(m.group(1) or m.group(3)))
    for m in re.finditer(r"\bs(\d+)\b|\bs\[(\d+):(\d+)\]", text):
        ms = max(ms, int(m.group(1) or m.group(3)))
    return mv + 1, ms + 1

def kernel_text(name, prog, extra_desc=""):
    body = prog.finalize()
    nv, ns = max_regs("\n".join(l.split(";")[0] for l in body.split("\n")))
    nv = max(nv, 8)
    acc = (nv + 3) // 4 * 4
    assert nv <= 256, nv
    assert ns <= 102, ns
    t = f""".text
.globl {name}
.p2align 8
.type {name},@function
{name}:
{body}
.section .rodata,"a"
.p2align 6
.amdhsa_kernel {name}
  .amdhsa_next_free_vgpr {nv}
  .amdhsa_next_free_sgpr {ns}
  .amdhsa_accum_offset {acc}
  .amdhsa_group_segment_fixed_size 0
  .amdhsa_kernarg_size 112
  .amdhsa_user_sgpr_count 2
  .amdhsa_user_sgpr_kernarg_segment_ptr 1
  .amdhsa_system_sgpr_workgroup_id_x 1
{extra_desc}.end_amdhsa_kernel
"""
    return t
```

```python
from asmlib import *
from layout import *

def srd(p, d, lo, nbytes):
    p(f"""
    s_mov_b32 s{d}, s{lo}
    s_mov_b32 s{d+1}, s{lo+1}
    s_mov_b32 s{d+2}, {nbytes}
    s_mov_b32 s{d+3}, 0x00020000
    """)

def rnd_bf16(p, d, a):
    p(f"v_cvt_pk_bf16_f32 v{d}, v{a}, v{a}")
    p(f"v_lshlrev_b32 v{d}, 16, v{d}")

def build_k1():
    p = Prog()
    p("""
    s_cmp_ge_u32 s2, 256
    s_cbranch_scc1 K1_END
    s_load_dwordx16 s[16:31], s[0:1], 0
    s_load_dwordx8 s[32:39], s[0:1], 64
    s_load_dwordx2 s[40:41], s[0:1], 104
    v_lshrrev_b32 v1, 6, v0
    v_and_b32 v2, 63, v0
    v_readfirstlane_b32 s3, v1
    s_waitcnt lgkmcnt(0)
    """)
    srd(p, 4, 40, hex(WS_SIZE))
    p("""
    s_cmp_lt_u32 s2, 96
    s_cbranch_scc1 K1_MOD
    s_cmp_lt_u32 s2, 160
    s_cbranch_scc1 K1_STAT
    s_cmp_lt_u32 s2, 248
    s_cbranch_scc1 K1_TR
    """)
    p("""
    s_sub_u32 s42, s2, 248
    s_and_b32 s43, s42, 1
    s_cmp_eq_u32 s43, 0
    s_cselect_b32 s8, s20, s22
    s_cselect_b32 s9, s21, s23
    s_mov_b32 s10, 16384
    s_mov_b32 s11, 0x00020000
    s_lshr_b32 s44, s42, 1
    s_lshl_b32 s44, s44, 2
    s_add_u32 s44, s44, s3
    s_lshl_b32 s44, s44, 2
    v_lshrrev_b32 v3, 4, v2
    v_add_u32 v3, s44, v3
    v_and_b32 v4, 15, v2
    v_lshlrev_b32 v5, 8, v3
    v_lshl_add_u32 v5, v4, 1, v5
    """)
    for i in range(8):
        p(f"buffer_load_ushort v{10+i}, v5, s[8:11], 0 offen offset:{i*32}")
    p(f"""
    v_and_b32 v6, 3, v4
    v_and_b32 v7, 4, v4
    v_lshl_or_b32 v6, v7, 1, v6
    v_and_b32 v7, 8, v4
    v_lshrrev_b32 v7, 1, v7
    v_or_b32 v6, v6, v7
    s_lshl_b32 s43, s43, 4
    v_add_u32 v6, s43, v6
    v_lshlrev_b32 v6, 4, v6
    v_lshl_add_u32 v6, v3, 9, v6
    s_mov_b32 s45, {hex(WS_WKVF)}
    s_waitcnt vmcnt(0)
    """)
    for i in range(4):
        p(f"v_lshl_or_b32 v{20+i}, v{11+2*i}, 16, v{10+2*i}")
    p("""
    buffer_store_dwordx4 v[20:23], v6, s[4:7], s45 offen
    s_endpgm
    """)
    p.label("K1_TR")
    p(f"""
    s_sub_u32 s42, s2, 160
    s_cmp_lt_u32 s42, 16
    s_cbranch_scc1 K1_TR_Q
    s_cmp_lt_u32 s42, 32
    s_cbranch_scc1 K1_TR_O
    s_sub_u32 s42, s42, 32
    s_mov_b32 s8, s32
    s_mov_b32 s9, s33
    s_mov_b32 s10, {1792*1024}
    s_mov_b32 s45, {hex(WS_WDF)}
    s_mov_b32 s46, {112*1024}
    s_branch K1_TR_GO
    """)
    p.label("K1_TR_Q")
    p(f"""
    s_mov_b32 s8, s18
    s_mov_b32 s9, s19
    s_mov_b32 s10, {512*1024}
    s_mov_b32 s45, {hex(WS_WQF)}
    s_mov_b32 s46, {32*1024}
    s_branch K1_TR_GO
    """)
    p.label("K1_TR_O")
    p(f"""
    s_sub_u32 s42, s42, 16
    s_mov_b32 s8, s24
    s_mov_b32 s9, s25
    s_mov_b32 s10, {512*1024}
    s_mov_b32 s45, {hex(WS_WOF)}
    s_mov_b32 s46, {32*1024}
    """)
    p.label("K1_TR_GO")
    p("""
    s_mov_b32 s11, 0x00020000
    s_and_b32 s43, s42, 7
    s_lshr_b32 s44, s42, 3
    s_lshl_b32 s44, s44, 2
    s_add_u32 s44, s44, s3
    s_lshl_b32 s47, s44, 16
    s_lshl_b32 s48, s43, 7
    s_add_u32 s47, s47, s48
    v_lshlrev_b32 v5, 1, v2
    """)
    for i in range(64):
        p(f"buffer_load_ushort v{10+i}, v5, s[8:11], s47 offen offset:{(i%4)*1024}")
        if i % 4 == 3 and i != 63:
            p("s_add_u32 s47, s47, 4096")
    p("""
    v_and_b32 v6, 19, v2
    v_and_b32 v7, 4, v2
    v_lshl_or_b32 v6, v7, 1, v6
    v_and_b32 v7, 8, v2
    v_lshrrev_b32 v7, 1, v7
    v_or_b32 v6, v6, v7
    v_lshlrev_b32 v6, 4, v6
    v_lshrrev_b32 v7, 5, v2
    v_mul_lo_u32 v7, v7, s46
    v_add_u32 v6, v6, v7
    s_lshl_b32 s48, s43, 1
    s_mul_i32 s48, s48, s46
    s_add_u32 s45, s45, s48
    s_lshl_b32 s48, s44, 12
    s_add_u32 s45, s45, s48
    """)
    for j in range(8):
        p(f"s_waitcnt vmcnt({56 - 8*j + j})" if j < 7 else f"s_waitcnt vmcnt({j})")
        for i in range(4):
            p(f"v_lshl_or_b32 v{80+4*j+i}, v{11+8*j+2*i}, 16, v{10+8*j+2*i}")
        p(f"buffer_store_dwordx4 v[{80+4*j}:{83+4*j}], v6, s[4:7], s45 offen offset:{j*512}")
    p("s_endpgm")
    p.label("K1_STAT")
    srd(p, 8, 16, 2048*1024)
    p("""
    s_sub_u32 s42, s2, 96
    s_lshl_b32 s42, s42, 2
    s_add_u32 s42, s42, s3
    s_lshl_b32 s43, s42, 13
    s_add_u32 s44, s43, 4096
    v_lshlrev_b32 v5, 4, v2
    """)
    for i in range(8):
        p(f"buffer_load_dwordx4 v[{12+4*i}:{15+4*i}], v5, s[8:11], s{43 + i//4} offen offset:{(i%4)*1024}")
    p("v_mov_b32 v6, 0x3f803f80")
    for i in range(16):
        p(f"v_mov_b32 v{48+i}, 0")
    for i in range(8):
        p(f"s_waitcnt vmcnt({7-i})")
        for j in range(4):
            p(f"v_dot2_f32_bf16 v{48+2*i}, v{12+4*i+j}, v6, v{48+2*i}")
            p(f"v_dot2_f32_bf16 v{49+2*i}, v{12+4*i+j}, v{12+4*i+j}, v{49+2*i}")
    for mod in ("quad_perm:[1,0,3,2] row_mask:0xf bank_mask:0xf", "quad_perm:[2,3,0,1] row_mask:0xf bank_mask:0xf",
                "row_half_mirror row_mask:0xf bank_mask:0xf", "row_mirror row_mask:0xf bank_mask:0xf",
                "row_bcast:15 row_mask:0xa bank_mask:0xf", "row_bcast:31 row_mask:0xc bank_mask:0xf"):
        for i in range(16):
            p(f"v_add_f32_dpp v{48+i}, v{48+i}, v{48+i} {mod}")
    for i in range(16):
        p(f"v_readlane_b32 s{48+i}, v{48+i}, 63")
    p("v_mov_b32 v8, 0\nv_mov_b32 v9, 0")
    for i in range(8):
        p(f"v_writelane_b32 v8, s{48+2*i}, {i}")
        p(f"v_writelane_b32 v9, s{49+2*i}, {i}")
    p(f"""
    v_mul_f32 v8, {hx(1/512)}, v8
    v_mul_f32 v9, {hx(1/512)}, v9
    v_fma_f32 v9, -v8, v8, v9
    v_max_f32 v9, 0, v9
    """)
    rnd_bf16(p, 8, 8)
    rnd_bf16(p, 9, 9)
    p(f"v_add_f32 v9, {hx(1e-5)}, v9")
    rnd_bf16(p, 9, 9)
    p("v_sqrt_f32 v9, v9")
    rnd_bf16(p, 9, 9)
    p(f"""
    v_rcp_f32 v10, v9
    v_mul_f32 v11, v8, v10
    v_sub_f32 v11, 0, v11
    v_lshlrev_b32 v5, 3, v2
    s_lshl_b32 s43, s42, 6
    s_add_u32 s43, s43, {hex(WS_ST1)}
    s_mov_b64 exec, 0xff
    buffer_store_dwordx2 v[10:11], v5, s[4:7], s43 offen
    s_endpgm
    """)
    p.label("K1_MOD")
    srd(p, 8, 36, 512*6144)
    srd(p, 12, 34, 1024)
    p(f"""
    v_and_b32 v3, 3, v0
    v_lshrrev_b32 v4, 2, v0
    v_lshlrev_b32 v6, 1, v4
    s_mov_b32 s42, 6144
    v_mul_lo_u32 v5, v4, s42
    v_lshl_add_u32 v5, v3, 4, v5
    s_lshl_b32 s43, s2, 6
    """)
    for i in range(8):
        p(f"buffer_load_ushort v{44+i}, v6, s[12:15], 0 offen offset:{i*128}")
    for i in range(8):
        p(f"buffer_load_dwordx4 v[{12+4*i}:{15+4*i}], v5, s[8:11], s43 offen")
        if i < 7:
            p(f"s_add_u32 s43, s43, {64*6144}")
    for i in range(8):
        p(f"v_mov_b32 v{60+i}, 0")
    p("s_waitcnt vmcnt(8)")
    for i in range(8):
        p(f"v_lshlrev_b32 v{44+i}, 16, v{44+i}")
    for i in range(8):
        p(f"v_mul_f32 v{52+i}, {hx(-LOG2E)}, v{44+i}")
    for i in range(8):
        p(f"v_exp_f32 v{52+i}, v{52+i}")
    for i in range(8):
        p(f"v_add_f32 v{52+i}, 1.0, v{52+i}")
    for i in range(8):
        p(f"v_rcp_f32 v{52+i}, v{52+i}")
    for i in range(8):
        p(f"v_mul_f32 v{44+i}, v{44+i}, v{52+i}")
    for i in range(8):
        rnd_bf16(p, 44+i, 44+i)
    for i in range(8):
        p(f"s_waitcnt vmcnt({7-i})")
        for j in range(4):
            p(f"v_lshlrev_b32 v7, 16, v{12+4*i+j}")
            p(f"v_and_b32 v8, 0xffff0000, v{12+4*i+j}")
            p(f"v_fmac_f32 v{60+2*j}, v7, v{44+i}")
            p(f"v_fmac_f32 v{61+2*j}, v8, v{44+i}")
    for mod in ("row_ror:4 row_mask:0xf bank_mask:0xf", "row_ror:8 row_mask:0xf bank_mask:0xf"):
        for i in range(8):
            p(f"v_add_f32_dpp v{60+i}, v{60+i}, v{60+i} {mod}")
    p("""
    v_lshrrev_b32 v7, 4, v0
    v_lshlrev_b32 v7, 7, v7
    v_lshl_add_u32 v7, v3, 5, v7
    ds_write_b128 v7, v[60:63]
    ds_write_b128 v7, v[64:67] offset:16
    s_waitcnt lgkmcnt(0)
    s_barrier
    s_cmp_lg_u32 s3, 0
    s_cbranch_scc1 K1_END
    v_and_b32 v7, 31, v0
    v_lshlrev_b32 v7, 2, v7
    """)
    for i in range(16):
        p(f"ds_read_b32 v{12+i}, v7 offset:{i*128}")
    p("s_waitcnt lgkmcnt(0)")
    for st in (1, 2, 4, 8):
        for i in range(0, 16, 2*st):
            p(f"v_add_f32 v{12+i}, v{12+i}, v{12+i+st}")
    rnd_bf16(p, 12, 12)
    p("""
    s_lshr_b32 s42, s2, 4
    s_cmp_eq_u32 s42, 1
    s_cbranch_scc1 K1_MOD_P1
    s_cmp_eq_u32 s42, 4
    s_cbranch_scc0 K1_MOD_ST
    """)
    p.label("K1_MOD_P1")
    p("v_add_f32 v12, 1.0, v12")
    rnd_bf16(p, 12, 12)
    p.label("K1_MOD_ST")
    p(f"""
    s_lshl_b32 s43, s2, 7
    s_add_u32 s43, s43, {hex(WS_MOD)}
    buffer_store_dword v12, v7, s[4:7], s43 offen
    """)
    p.label("K1_END")
    p("s_endpgm")
    return p
```

```python
from asmlib import *
from layout import *
from k1 import srd, rnd_bf16

S1, S2 = 1056, 528
K2_LDS = 32 * S1
K2_MAIN = 320
K2_GRID = 320 + 112

def build_k2():
    p = Prog()
    p(f"""
    s_cmp_ge_u32 s2, {K2_GRID}
    s_cbranch_scc1 K2_END
    s_load_dwordx2 s[16:17], s[0:1], 0
    s_load_dwordx4 s[20:23], s[0:1], 48
    s_load_dwordx2 s[40:41], s[0:1], 104
    v_lshrrev_b32 v1, 6, v0
    v_and_b32 v2, 63, v0
    v_readfirstlane_b32 s3, v1
    v_lshlrev_b32 v3, 4, v2
    s_waitcnt lgkmcnt(0)
    """)
    srd(p, 4, 40, hex(WS_SIZE))
    p(f"""
    s_cmp_ge_u32 s2, {K2_MAIN}
    s_cbranch_scc1 K2_PREP
    """)
    srd(p, 8, 16, 2048*1024)
    p(f"""
    s_and_b32 s43, s2, 3
    s_lshr_b32 s42, s2, 2
    s_sub_u32 s44, s2, 256
    s_cmp_ge_u32 s2, 256
    s_cselect_b32 s43, 4, s43
    s_cselect_b32 s42, s44, s42
    s_lshl_b32 s44, s42, 2
    s_add_u32 s44, s44, s3
    s_lshl_b32 s45, s44, 6
    s_add_u32 s46, s40, s45
    s_addc_u32 s47, s41, 0
    s_load_dwordx16 s[48:63], s[46:47], {WS_ST1}
    s_lshl_b32 s45, s44, 13
    s_add_u32 s64, s45, 4096
    s_mov_b32 s65, s45
    """)
    for i in range(8):
        p(f"buffer_load_dwordx4 v[{12+4*i}:{15+4*i}], v3, s[8:11], s{65 - i//4} offen offset:{(i%4)*1024}")
    p(f"""
    v_lshlrev_b32 v4, 5, v2
    buffer_load_dwordx4 v[44:47], v4, s[4:7], 0 offen offset:{WS_MOD}
    buffer_load_dwordx4 v[48:51], v4, s[4:7], 0 offen offset:{WS_MOD+16}
    buffer_load_dwordx4 v[52:55], v4, s[4:7], 0 offen offset:{WS_MOD+2048}
    buffer_load_dwordx4 v[56:59], v4, s[4:7], 0 offen offset:{WS_MOD+2048+16}
    s_lshl_b32 s66, s43, 2
    s_add_u32 s66, s66, s3
    s_lshl_b32 s67, s66, 15
    s_add_u32 s67, s67, {hex(WS_WQF)}
    s_cmp_eq_u32 s43, 4
    s_cselect_b32 s67, {hex(WS_WKVF)}, s67
    """)
    WB = 96
    for ks in range(32):
        p(f"buffer_load_dwordx4 v[{WB+4*ks}:{WB+3+4*ks}], v3, s[4:7], s67 offen offset:{(ks%4)*1024}")
        if ks % 4 == 3 and ks != 31:
            p("s_add_u32 s67, s67, 4096")
    p(f"""
    v_lshrrev_b32 v5, 1, v2
    v_mul_u32_u24 v5, {S1}, v5
    v_and_b32 v6, 1, v2
    v_mul_u32_u24 v6, {S2}, v6
    s_lshl_b32 s68, s3, 7
    v_add3_u32 v5, v5, v6, s68
    v_lshrrev_b32 v6, 5, v2
    v_mul_u32_u24 v6, {S2}, v6
    v_and_b32 v7, 31, v2
    v_lshl_add_u32 v6, v7, 4, v6
    s_waitcnt lgkmcnt(0)
    s_waitcnt vmcnt(32)
    """)
    for i in range(8):
        x = 12 + 4*i
        for j in range(4):
            p(f"v_lshlrev_b32 v{60+2*j}, 16, v{x+j}")
            p(f"v_and_b32 v{61+2*j}, 0xffff0000, v{x+j}")
        for j in range(4):
            p(f"v_pk_fma_f32 v[{60+2*j}:{61+2*j}], v[{60+2*j}:{61+2*j}], s[{48+2*i}:{49+2*i}], s[{48+2*i}:{49+2*i}] op_sel:[0,0,1] op_sel_hi:[1,0,1]")
        for j in range(4):
            p(f"v_pk_fma_f32 v[{60+2*j}:{61+2*j}], v[{60+2*j}:{61+2*j}], v[{52+2*j}:{53+2*j}], v[{44+2*j}:{45+2*j}]")
        for j in range(4):
            p(f"v_cvt_pk_bf16_f32 v{x+j}, v{60+2*j}, v{61+2*j}")
        p(f"ds_write_b128 v5, v[{x}:{x+3}] offset:{i*16}")
    p("""
    s_waitcnt lgkmcnt(0)
    s_barrier
    s_cmp_eq_u32 s43, 4
    s_cbranch_scc1 K2_KV
    """)
    ACC = 76
    def chain(swap):
        D = 8
        for ks in range(D):
            p(f"ds_read_b128 v[{12+4*ks}:{15+4*ks}], v6 offset:{ks*S1}")
        for ks in range(32):
            sl = ks % D
            rem = min(31 - ks, D - 1)
            p(f"s_waitcnt vmcnt({31-ks}) lgkmcnt({rem})")
            w = f"v[{WB+4*ks}:{WB+3+4*ks}]"
            h = f"v[{12+4*sl}:{15+4*sl}]"
            a, b = (h, w) if swap else (w, h)
            c = "0" if ks == 0 else f"v[{ACC}:{ACC+15}]"
            p(f"v_mfma_f32_32x32x16_bf16 v[{ACC}:{ACC+15}], {a}, {b}, {c}")
            if ks + D < 32:
                p(f"ds_read_b128 v[{12+4*sl}:{15+4*sl}], v6 offset:{(ks+D)*S1}")
    chain(False)
    p(f"""
    s_mov_b32 s70, {hx(0.25*LOG2E)}
    s_lshl_b32 s71, s42, 15
    s_lshl_b32 s72, s66, 11
    s_add_u32 s71, s71, s72
    s_add_u32 s71, s71, {hex(WS_QF)}
    """)
    for r in range(16):
        p(f"v_mul_f32 v{ACC+r}, s70, v{ACC+r}")
    for r in range(8):
        p(f"v_cvt_pk_bf16_f32 v{60+r}, v{ACC+2*r}, v{ACC+2*r+1}")
    p("""
    buffer_store_dwordx4 v[60:63], v3, s[4:7], s71 offen
    buffer_store_dwordx4 v[64:67], v3, s[4:7], s71 offen offset:1024
    s_endpgm
    """)
    p.label("K2_KV")
    p("""
    s_cmp_ge_u32 s3, 2
    s_cbranch_scc1 K2_END
    s_cmp_eq_u32 s3, 1
    s_cbranch_scc1 K2_V
    """)
    chain(False)
    p(f"""
    v_and_b32 v8, 51, v2
    v_and_b32 v9, 4, v2
    v_lshl_or_b32 v8, v9, 1, v8
    v_and_b32 v9, 8, v2
    v_lshrrev_b32 v9, 1, v9
    v_or_b32 v8, v8, v9
    v_lshlrev_b32 v8, 4, v8
    s_lshl_b32 s71, s42, 10
    s_add_u32 s71, s71, {hex(WS_KV)}
    """)
    for r in range(4):
        p(f"v_cvt_pk_bf16_f32 v{60+r}, v{ACC+2*r}, v{ACC+2*r+1}")
    p("""
    buffer_store_dwordx4 v[60:63], v8, s[4:7], s71 offen
    s_endpgm
    """)
    p.label("K2_V")
    chain(True)
    p(f"""
    v_and_b32 v8, 15, v2
    v_lshlrev_b32 v8, 4, v8
    v_lshrrev_b32 v9, 5, v2
    v_lshl_add_u32 v8, v9, 8, v8
    s_lshl_b32 s71, s42, 10
    s_add_u32 s71, s71, {hex(WS_KV + 65536)}
    """)
    for r in range(8):
        p(f"v_cvt_pk_bf16_f32 v{60+r}, v{ACC+2*r}, v{ACC+2*r+1}")
    p("""
    s_mov_b32 exec_lo, 0xffff0000
    s_mov_b32 exec_hi, 0xffff0000
    buffer_store_dwordx4 v[60:63], v8, s[4:7], s71 offen
    buffer_store_dwordx4 v[64:67], v8, s[4:7], s71 offen offset:512
    s_endpgm
    """)
    p.label("K2_PREP")
    p(f"""
    s_sub_u32 s42, s2, {K2_MAIN}
    s_and_b32 s43, s42, 1
    s_bfe_u32 s44, s42, 0x10001
    s_lshr_b32 s45, s42, 2
    s_cmp_eq_u32 s43, 0
    s_cselect_b32 s8, s20, s22
    s_cselect_b32 s9, s21, s23
    s_mov_b32 s10, {512*3584}
    s_mov_b32 s11, 0x00020000
    s_lshl_b32 s46, s44, 2
    s_add_u32 s46, s46, s3
    s_lshl_b32 s12, s46, 8
    s_add_u32 s12, s40, s12
    s_addc_u32 s13, s41, 0
    s_load_dwordx16 s[48:63], s[12:13], {WS_MOD + 4*2048}
    s_load_dwordx16 s[64:79], s[12:13], {WS_MOD + 4*2048 + 64}
    s_load_dwordx16 s[80:95], s[12:13], {WS_MOD + 3*2048}
    s_load_dwordx16 s[16:31], s[12:13], {WS_MOD + 3*2048 + 64}
    s_mul_i32 s47, s46, {64*3584}
    s_lshl_b32 s14, s45, 7
    s_add_u32 s47, s47, s14
    v_lshlrev_b32 v5, 1, v2
    """)
    for i in range(64):
        p(f"buffer_load_ushort v{10+i}, v5, s[8:11], s47 offen offset:{(i%2)*3584}")
        if i % 2 == 1 and i != 63:
            p(f"s_add_u32 s47, s47, {2*3584}")
    p(f"""
    v_and_b32 v6, 3, v2
    v_and_b32 v7, 4, v2
    v_lshl_or_b32 v6, v7, 1, v6
    v_and_b32 v7, 8, v2
    v_lshrrev_b32 v7, 1, v7
    v_or_b32 v6, v6, v7
    s_lshl_b32 s14, s43, 4
    v_add_u32 v6, s14, v6
    v_lshlrev_b32 v6, 4, v6
    v_lshrrev_b32 v7, 4, v2
    v_mul_u32_u24 v7, {GU_TILE}, v7
    v_add_u32 v6, v6, v7
    s_mul_i32 s14, s45, {4*GU_TILE}
    s_add_u32 s14, s14, {hex(WS_WGUF)}
    s_lshl_b32 s15, s46, 12
    s_add_u32 s15, s15, s14
    v_mov_b32 v8, 0
    v_mov_b32 v9, 0
    v_mov_b32 v4, 0x3f803f80
    s_waitcnt lgkmcnt(0)
    """)
    def gs(i):
        return 48 + i, (80 + i if i < 16 else 16 + i - 16)
    for j in range(8):
        if j == 4:
            p(f"""
            s_load_dwordx16 s[48:63], s[12:13], {WS_MOD + 4*2048 + 128}
            s_load_dwordx16 s[64:79], s[12:13], {WS_MOD + 4*2048 + 192}
            s_load_dwordx16 s[80:95], s[12:13], {WS_MOD + 3*2048 + 128}
            s_load_dwordx16 s[16:31], s[12:13], {WS_MOD + 3*2048 + 192}
            s_waitcnt lgkmcnt(0)
            """)
        p(f"s_waitcnt vmcnt({56 - 8*j + j})")
        for i in range(8):
            r = 10 + 8*j + i
            g, sb = gs((8*j + i) % 32)
            p(f"v_lshlrev_b32 v{r}, 16, v{r}")
            p(f"v_fmac_f32 v9, s{sb}, v{r}")
            p(f"v_mul_f32 v{r}, s{g}, v{r}")
        for i in range(4):
            p(f"v_cvt_pk_bf16_f32 v{80+4*j+i}, v{10+8*j+2*i}, v{11+8*j+2*i}")
        for i in range(4):
            p(f"v_dot2_f32_bf16 v8, v{80+4*j+i}, v4, v8")
        p(f"buffer_store_dwordx4 v[{80+4*j}:{83+4*j}], v6, s[4:7], s15 offen offset:{j*512}")
    p("""
    v_lshlrev_b32 v5, 3, v0
    ds_write_b64 v5, v[8:9]
    s_waitcnt lgkmcnt(0)
    s_barrier
    s_cmp_lg_u32 s3, 0
    s_cbranch_scc1 K2_END
    ds_read_b64 v[10:11], v5 offset:512
    ds_read_b64 v[12:13], v5 offset:1024
    ds_read_b64 v[14:15], v5 offset:1536
    s_waitcnt lgkmcnt(0)
    v_add_f32 v8, v8, v10
    v_add_f32 v9, v9, v11
    v_add_f32 v12, v12, v14
    v_add_f32 v13, v13, v15
    v_add_f32 v8, v8, v12
    v_add_f32 v9, v9, v13
    """)
    for src, d in ((8, 20), (9, 23)):
        rnd_bf16(p, d, src)
        p(f"v_sub_f32 v{src}, v{src}, v{d}")
        rnd_bf16(p, d+1, src)
        p(f"v_sub_f32 v{d+2}, v{src}, v{d+1}")
    p(f"""
    v_cvt_pk_bf16_f32 v28, v20, v21
    v_cvt_pk_bf16_f32 v29, v22, v23
    v_cvt_pk_bf16_f32 v30, v24, v25
    v_mov_b32 v31, 0
    s_lshl_b32 s15, s44, 9
    s_add_u32 s15, s15, s14
    s_add_u32 s15, s15, {32*1024}
    buffer_store_dwordx4 v[28:31], v6, s[4:7], s15 offen
    """)
    p.label("K2_END")
    p("s_endpgm")
    return p
```

```python
from asmlib import *
from layout import *
from k1 import srd

K3_LDS = 131072
QF = 4
IDX = 8
KA = 9
VA = 10
KB = [12, 16]
VB = [[20, 24], [28, 32]]
NEG = 36
O = 52
S = [68, 84]

def build_k3():
    p = Prog()
    p(f"""
    s_cmp_ge_u32 s2, 256
    s_cbranch_scc1 K3_END
    s_load_dwordx2 s[40:41], s[0:1], 104
    v_lshrrev_b32 v1, 6, v0
    v_and_b32 v2, 63, v0
    v_readfirstlane_b32 s3, v1
    v_lshlrev_b32 v3, 4, v2
    s_waitcnt lgkmcnt(0)
    """)
    srd(p, 4, 40, hex(WS_SIZE))
    p(f"""
    s_lshl_b32 s42, s2, 3
    s_add_u32 s42, s42, s3
    s_lshl_b32 s42, s42, 10
    s_add_u32 s43, s42, {hex(WS_QF)}
    s_add_u32 s42, s42, {hex(WS_OF)}
    buffer_load_dwordx4 v[{QF}:{QF+3}], v3, s[4:7], s43 offen
    s_lshl_b32 s44, s3, 10
    s_add_u32 s45, s44, {hex(WS_KV)}
    """)
    for c in range(8):
        for part in range(2):
            off = c*8192 + part*65536
            p(f"s_add_u32 m0, s44, {off}")
            p(f"s_add_u32 s46, s45, {off}")
            p(f"buffer_load_dwordx4 v3, s[4:7], s46 offen lds")
    p(f"""
    v_mov_b32 v{IDX}, 0xdddddddd
    v_mov_b32 v{KA}, v3
    v_and_b32 v11, 15, v2
    v_lshlrev_b32 v11, 4, v11
    v_lshrrev_b32 v{VA}, 5, v2
    v_lshl_add_u32 v{VA}, v{VA}, 8, v11
    v_add_u32 v{VA}, 0x10000, v{VA}
    s_mov_b32 s50, 0x0000ffff
    s_mov_b32 s51, 0x0000ffff
    """)
    for st in range(2):
        for pp in range(2):
            for i in range(4):
                p(f"v_mov_b32 v{VB[st][pp]+i}, 0x3f803f80")
    for i in range(16):
        p(f"v_mov_b32 v{O+i}, 0")
    def kread(buf, off):
        p(f"ds_read_b128 v[{KB[buf]}:{KB[buf]+3}], v{KA} offset:{off}")
    def vread(st, off):
        p("s_mov_b64 exec, s[50:51]")
        p(f"ds_read_b128 v[{VB[st][0]}:{VB[st][0]+3}], v{VA} offset:{off}")
        p(f"ds_read_b128 v[{VB[st][1]}:{VB[st][1]+3}], v{VA} offset:{off+512}")
        p("s_mov_b64 exec, -1")
    def qk(sb, kb, c):
        p(f"v_mfma_f32_32x32x16_bf16 v[{S[sb]}:{S[sb]+15}], v[{KB[kb]}:{KB[kb]+3}], v[{QF}:{QF+3}], {c}")
    def pv(sb, st, pp):
        p(f"v_smfmac_f32_32x32x32_bf16 v[{O}:{O+15}], v[{VB[st][pp]}:{VB[st][pp]+3}], v[{S[sb]+8*pp}:{S[sb]+8*pp+7}], v{IDX}")
    def negm_from(r):
        p(f"""
        v_mov_b32 v11, v{r}
        v_permlane32_swap_b32 v11, v{r}
        v_max_f32 v{r}, v11, v{r}
        """)
        for i in range(16):
            p(f"v_sub_f32 v{NEG+i}, 0, v{r}")
    NEGC = f"v[{NEG}:{NEG+15}]"
    p("""
    s_waitcnt vmcnt(14)
    s_barrier
    """)
    kread(0, 0)
    kread(1, 1024)
    vread(0, 0)
    p("s_waitcnt lgkmcnt(3)")
    qk(1, 0, "0")
    sb = S[1]
    p(f"v_max3_f32 v{sb}, v{sb}, v{sb+1}, v{sb+2}")
    for i in range(3, 15, 2):
        p(f"v_max3_f32 v{sb}, v{sb}, v{sb+i}, v{sb+i+1}")
    p(f"v_max_f32 v{sb}, v{sb}, v{sb+15}")
    negm_from(sb)
    p("""
    s_mov_b32 s52, 0
    s_mov_b32 s53, 8
    s_mov_b32 s55, 0
    """)
    p.label("K3_RESTART")
    qk(0, 0, NEGC)
    for i in range(16):
        if i >= 8:
            p(f"v_mov_b32 v{S[1]+i}, 0")
    p(".p2align 3")
    p.label("K3_LOOP")
    for t in range(8):
        cur, nxt = t % 2, (t + 1) % 2
        sc = S[cur]
        if t == 6:
            p("""
            s_cmp_ge_u32 s52, 2
            s_cbranch_scc1 K3_NOSYNC
            s_cmp_eq_u32 s52, 1
            s_cbranch_scc1 K3_SYNC1
            s_waitcnt vmcnt(12)
            s_branch K3_SYNCB
            """)
            p.label("K3_SYNC1")
            p("s_waitcnt vmcnt(0)")
            p.label("K3_SYNCB")
            p("s_barrier")
            p.label("K3_NOSYNC")
        for i in range(16):
            p(f"v_exp_f32 v{sc+i}, v{sc+i}")
            if i == 1:
                pv(nxt, nxt, 1)
                kread(cur, (t + 2) * 1024)
            if i == 2:
                vread(nxt, (t + 1) * 1024)
            if i == 4:
                p("s_waitcnt lgkmcnt(3)")
                qk(nxt, nxt, NEGC)
            if i == 9:
                pv(cur, cur, 0)
    p(f"""
    v_add_u32 v{KA}, 0x2000, v{KA}
    v_add_u32 v{VA}, 0x2000, v{VA}
    s_add_u32 s52, s52, 1
    s_cmp_lt_u32 s52, s53
    s_cbranch_scc1 K3_LOOP
    """)
    pv(1, 1, 1)
    p(f"s_mov_b32 s54, {hx(2.0**110)}")
    p(f"v_add_f32 v11, v{O+8}, abs(v{O})")
    for i in range(1, 8):
        p(f"v_add_f32 v11, v11, abs(v{O+i})")
    p(f"""
    v_cmp_nle_f32 vcc, v11, s54
    s_cmp_eq_u32 s55, 1
    s_cbranch_scc1 K3_FIN
    s_cbranch_vccnz K3_FALLBACK
    """)
    p.label("K3_FIN")
    p(f"v_rcp_f32 v11, v{O+8}")
    for i in range(8):
        p(f"v_mul_f32 v{O+i}, v{O+i}, v11")
    for i in range(4):
        p(f"v_cvt_pk_bf16_f32 v{12+i}, v{O+2*i}, v{O+2*i+1}")
    p("""
    buffer_store_dwordx4 v[12:15], v3, s[4:7], s42 offen
    s_endpgm
    """)
    p.label("K3_FALLBACK")
    p(f"""
    s_waitcnt lgkmcnt(0)
    v_mov_b32 v{KA}, v3
    v_add_u32 v{VA}, 0xffff0000, v{VA}
    v_mov_b32 v1, 0xff800000
    s_mov_b32 s56, 0
    """)
    p.label("K3_FB_LOOP")
    kread(0, 0)
    p("s_waitcnt lgkmcnt(0)")
    qk(0, 0, "0")
    for i in range(0, 16, 2):
        p(f"v_max3_f32 v1, v1, v{S[0]+i}, v{S[0]+i+1}")
    p(f"""
    v_add_u32 v{KA}, 0x400, v{KA}
    s_add_u32 s56, s56, 1
    s_cmp_lt_u32 s56, 64
    s_cbranch_scc1 K3_FB_LOOP
    v_mov_b32 v{KA}, v3
    """)
    negm_from(1)
    for i in range(16):
        p(f"v_mov_b32 v{O+i}, 0")
    kread(0, 0)
    kread(1, 1024)
    vread(0, 0)
    p("""
    s_waitcnt lgkmcnt(0)
    s_mov_b32 s55, 1
    s_mov_b32 s53, 16
    s_branch K3_RESTART
    """)
    p.label("K3_END")
    p("s_endpgm")
    return p
```

```python
from asmlib import *
from layout import *
from k1 import srd

def build_gemm22(name, KS, wbase, abase, mode):
    SK = 4
    NST = KS // SK
    RING = 8
    L = name.upper()
    p = Prog()
    p(f"""
    s_cmp_ge_u32 s2, 256
    s_cbranch_scc1 {L}_END
    s_load_dwordx2 s[16:17], s[0:1], {0 if mode == 'wo' else 88}
    s_load_dwordx2 s[40:41], s[0:1], 104
    v_lshrrev_b32 v1, 6, v0
    v_and_b32 v2, 63, v0
    v_readfirstlane_b32 s3, v1
    v_lshlrev_b32 v3, 4, v2
    s_waitcnt lgkmcnt(0)
    """)
    srd(p, 4, 40, hex(WS_SIZE))
    srd(p, 8, 16, 2048*1024)
    p(f"""
    s_and_b32 s42, s2, 7
    s_lshr_b32 s43, s2, 3
    s_and_b32 s44, s3, 1
    s_lshr_b32 s45, s3, 1
    s_lshl_b32 s46, s42, 1
    s_add_u32 s46, s46, s44
    s_lshl_b32 s47, s43, 1
    s_add_u32 s48, s47, s44
    s_add_u32 s47, s47, s45
    s_mul_i32 s49, s46, {KS*1024}
    s_add_u32 s49, s49, {hex(wbase)}
    s_mul_i32 s50, s48, {KS*1024}
    s_add_u32 s50, s50, {hex(abase)}
    s_cmp_eq_u32 s45, 0
    s_cselect_b32 s49, s49, s50
    s_lshl_b32 s51, s3, 12
    """)
    def issue(st):
        slot = st % RING
        p(f"s_add_u32 m0, s51, {slot*16384}")
        for k in range(SK):
            p(f"buffer_load_dwordx4 v3, s[4:7], s49 offen offset:{k*1024} lds")
        p("s_add_u32 s49, s49, 4096")
    npre = min(NST, RING)
    XR, GR = 44, 52
    if mode == 'wo':
        p(f"""
        v_and_b32 v4, 31, v2
        v_lshlrev_b32 v4, 10, v4
        v_lshrrev_b32 v5, 5, v2
        v_lshl_add_u32 v4, v5, 4, v4
        s_lshl_b32 s52, s47, 15
        s_lshl_b32 s53, s46, 6
        s_add_u32 s52, s52, s53
        """)
    else:
        p(f"""
        v_and_b32 v4, 31, v2
        v_lshlrev_b32 v4, 10, v4
        v_lshrrev_b32 v5, 5, v2
        v_lshl_add_u32 v4, v5, 4, v4
        s_lshl_b32 s52, s47, 15
        s_lshl_b32 s53, s46, 6
        s_add_u32 s52, s52, s53
        """)
    p(f"""
    s_lshl_b32 s54, s47, 15
    s_lshl_b32 s55, s46, 11
    s_add_u32 s54, s54, s55
    s_add_u32 s54, s54, {hex(WS_X1F)}
    v_lshlrev_b32 v6, 5, v5
    s_lshl_b32 s55, s46, 7
    s_add_u32 s55, s55, {WS_MOD + (2 if mode == 'wo' else 5)*2048}
    """)
    for st in range(npre):
        issue(st)
    if mode == 'wo':
        p(f"""
        buffer_load_dwordx4 v[{XR}:{XR+3}], v4, s[8:11], s52 offen
        buffer_load_dwordx4 v[{XR+4}:{XR+7}], v4, s[8:11], s52 offen offset:32
        """)
    else:
        p(f"""
        buffer_load_dwordx4 v[{XR}:{XR+3}], v3, s[4:7], s54 offen
        buffer_load_dwordx4 v[{XR+4}:{XR+7}], v3, s[4:7], s54 offen offset:1024
        """)
    p(f"""
    buffer_load_dwordx4 v[{GR}:{GR+3}], v6, s[4:7], s55 offen
    buffer_load_dwordx4 v[{GR+4}:{GR+7}], v6, s[4:7], s55 offen offset:16
    buffer_load_dwordx4 v[{GR+8}:{GR+11}], v6, s[4:7], s55 offen offset:64
    buffer_load_dwordx4 v[{GR+12}:{GR+15}], v6, s[4:7], s55 offen offset:80
    s_lshl_b32 s56, s44, 12
    s_lshl_b32 s57, s45, 12
    s_add_u32 s57, s57, 8192
    v_add_u32 v7, s56, v3
    v_add_u32 v8, s57, v3
    v_add_u32 v9, 0x10000, v7
    v_add_u32 v10, 0x10000, v8
    """)
    ACC = 68
    issued = npre
    total_after = 6
    for st in range(NST):
        younger = 4 * (issued - 1 - st) + (6 if st < npre else 0)
        p(f"s_waitcnt vmcnt({younger})")
        p("s_barrier")
        if issued < NST and st >= 1:
            issue(issued); issued += 1
        slot = st % RING
        ra, rb = (7, 8) if slot < 4 else (9, 10)
        so = (slot % 4) * 16384
        for k in range(SK):
            p(f"ds_read_b128 v[{12+8*k}:{15+8*k}], v{ra} offset:{so + k*1024}")
            p(f"ds_read_b128 v[{16+8*k}:{19+8*k}], v{rb} offset:{so + k*1024}")
        for k in range(SK):
            p(f"s_waitcnt lgkmcnt({2*(SK-1-k)})")
            c = "0" if (st == 0 and k == 0) else f"v[{ACC}:{ACC+15}]"
            p(f"v_mfma_f32_32x32x16_bf16 v[{ACC}:{ACC+15}], v[{12+8*k}:{15+8*k}], v[{16+8*k}:{19+8*k}], {c}")
    p("s_waitcnt vmcnt(0)")
    for j in range(8):
        p(f"v_lshlrev_b32 v{12+2*j}, 16, v{XR+j}")
        p(f"v_and_b32 v{13+2*j}, 0xffff0000, v{XR+j}")
    for r in range(16):
        p(f"v_fmac_f32 v{12+r}, v{GR+r}, v{ACC+r}")
    for j in range(8):
        p(f"v_cvt_pk_bf16_f32 v{28+j}, v{12+2*j}, v{13+2*j}")
    if mode == 'wo':
        p(f"""
        buffer_store_dwordx4 v[28:31], v3, s[4:7], s54 offen
        buffer_store_dwordx4 v[32:35], v3, s[4:7], s54 offen offset:1024
        v_mov_b32 v11, 0x3f803f80
        v_mov_b32 v12, 0
        v_mov_b32 v13, 0
        """)
        for j in range(8):
            p(f"v_dot2_f32_bf16 v12, v{28+j}, v11, v12")
            p(f"v_dot2_f32_bf16 v13, v{28+j}, v{28+j}, v13")
        p(f"""
        v_permlane32_swap_b32 v12, v13
        v_add_f32 v12, v12, v13
        v_lshlrev_b32 v14, 2, v2
        s_lshl_b32 s58, s47, 12
        s_lshl_b32 s59, s46, 8
        s_add_u32 s58, s58, s59
        s_add_u32 s58, s58, {hex(WS_ST2)}
        buffer_store_dword v12, v14, s[4:7], s58 offen
        """)
    else:
        p(f"""
        buffer_store_dwordx4 v[28:31], v4, s[8:11], s52 offen
        buffer_store_dwordx4 v[32:35], v4, s[8:11], s52 offen offset:32
        """)
    p.label(f"{L}_END")
    p("s_endpgm")
    return p
```

```python
from asmlib import *
from layout import *
from k1 import srd, rnd_bf16
import math

K5_LDS = 4 * GU_TILE
XB = 96
ACC = [64, 80]
WR = 12

def build_k5():
    p = Prog()
    p(f"""
    s_cmp_ge_u32 s2, 256
    s_cbranch_scc1 K5_END
    s_load_dwordx2 s[40:41], s[0:1], 104
    v_lshrrev_b32 v1, 6, v0
    v_and_b32 v2, 63, v0
    v_readfirstlane_b32 s3, v1
    v_lshlrev_b32 v3, 4, v2
    s_waitcnt lgkmcnt(0)
    """)
    srd(p, 4, 40, hex(WS_SIZE))
    p(f"""
    s_and_b32 s42, s2, 15
    s_lshr_b32 s43, s2, 4
    s_lshl_b32 s43, s43, 2
    s_add_u32 s43, s43, s3
    s_mul_i32 s44, s42, {7*GU_TILE}
    s_add_u32 s44, s44, {hex(WS_WGUF)}
    s_lshl_b32 s45, s3, 13
    s_add_u32 s46, s44, s45
    s_add_u32 s47, s44, {32*1024}
    s_lshl_b32 s48, s43, 15
    s_add_u32 s48, s48, {hex(WS_X1F)}
    s_lshl_b32 s49, s43, 12
    s_add_u32 s49, s49, {hex(WS_ST2)}
    s_mul_i32 s50, s43, {112*1024}
    s_mul_i32 s51, s42, {7*1024}
    s_add_u32 s50, s50, s51
    s_add_u32 s50, s50, {hex(WS_ACTF)}
    v_lshlrev_b32 v4, 2, v2
    """)
    def issue(j):
        slot = j % 4
        for half in range(2):
            p(f"s_add_u32 m0, s45, {slot*GU_TILE + half*4096}")
            if half == 1:
                p("s_add_u32 s52, s46, 4096")
            for k in range(4):
                p(f"buffer_load_dwordx4 v3, s[4:7], s{46 if half == 0 else 52} offen offset:{k*1024} lds")
        p(f"s_mov_b32 m0, {slot*GU_TILE + 32*1024}")
        p(f"s_add_u32 s46, s46, {GU_TILE}")
        p("buffer_load_dwordx4 v3, s[4:7], s47 offen lds")
        p(f"s_add_u32 s47, s47, {GU_TILE}")
    issue(0)
    for i in range(16):
        p(f"buffer_load_dword v{44+i}, v4, s[4:7], s49 offen offset:{i*256}")
    for ks in range(32):
        p(f"buffer_load_dwordx4 v[{XB+4*ks}:{XB+3+4*ks}], v3, s[4:7], s48 offen offset:{(ks%4)*1024}")
        if ks % 4 == 3 and ks != 31:
            p("s_add_u32 s48, s48, 4096")
    p("s_waitcnt vmcnt(32)")
    p("s_barrier")
    issue(1)
    for st in (1, 2, 4, 8):
        for i in range(0, 16, 2*st):
            p(f"v_add_f32 v{44+i}, v{44+i}, v{44+i+st}")
    p(f"""
    v_mov_b32 v45, v44
    v_permlane32_swap_b32 v44, v45
    v_mul_f32 v44, {hx(1/512)}, v44
    v_mul_f32 v45, {hx(1/512)}, v45
    v_fma_f32 v45, -v44, v44, v45
    v_max_f32 v45, 0, v45
    """)
    rnd_bf16(p, 45, 45)
    p(f"v_add_f32 v45, {hx(1e-5)}, v45")
    rnd_bf16(p, 45, 45)
    p("v_sqrt_f32 v45, v45")
    rnd_bf16(p, 45, 45)
    c2 = -2.0 * math.sqrt(2.0 / math.pi) * LOG2E
    c1 = c2 * 0.044715
    p(f"""
    v_sub_f32 v44, 0, v44
    v_cvt_pk_bf16_f32 v{XB+128}, v44, v44
    v_cvt_pk_bf16_f32 v{XB+129}, v44, v45
    v_cvt_pk_bf16_f32 v{XB+130}, v45, v45
    v_mov_b32 v{XB+131}, 0
    v_rcp_f32 v46, v45
    v_mul_f32 v5, v45, v45
    v_mul_f32 v6, {hx(c2)}, v46
    v_mul_f32 v7, v46, v46
    v_mul_f32 v7, v7, v6
    v_mul_f32 v7, {hx(0.044715)}, v7
    """)
    def epi_ops(acc, j):
        ops = []
        T = 44
        for r in range(8):
            ops.append(f"v_mul_f32 v{T+r}, v{acc+r}, v{acc+r}")
        for r in range(8):
            ops.append(f"v_fma_f32 v{T+r}, v{T+r}, v7, v6")
        for r in range(8):
            ops.append(f"v_mul_f32 v{T+r}, v{T+r}, v{acc+r}")
        for r in range(8):
            ops.append(f"v_exp_f32 v{T+r}, v{T+r}")
        for r in range(8):
            ops.append(f"v_mul_f32 v{T+8+r}, v{acc+r}, v{acc+8+r}")
        for r in range(8):
            ops.append(f"v_fma_f32 v{T+r}, v{T+r}, v5, v5")
        for r in range(8):
            ops.append(f"v_rcp_f32 v{T+r}, v{T+r}")
        ops.append("s_nop 0")
        for r in range(8):
            ops.append(f"v_mul_f32 v{T+8+r}, v{T+8+r}, v{T+r}")
        for r in range(4):
            ops.append(f"v_cvt_pk_bf16_f32 v{60+r}, v{T+8+2*r}, v{T+9+2*r}")
        ops.append(f"buffer_store_dwordx4 v[60:63], v3, s[4:7], s50 offen offset:{(j%4)*1024}")
        if j % 4 == 3:
            ops.append("s_add_u32 s50, s50, 4096")
        return ops
    D = 8
    led = ["W0"]*9 + ["S"]*16 + [f"X{k}" for k in range(32)] + ["W1"]*9
    def vm_wait(tag):
        idx = max(i for i, t in enumerate(led) if t == tag)
        n = len(led) - 1 - idx
        return n
    issue(2); led += ["W2"]*9
    issue(3); led += ["W3"]*9
    for j in range(7):
        slot = j % 4
        acc = ACC[j % 2]
        if j >= 1:
            n = vm_wait(f"W{j}")
            p(f"s_waitcnt vmcnt({min(n,63)})")
            p("s_barrier")
            if j + 3 < 7:
                issue(j + 3); led += [f"W{j+3}"]*9
        p(f"v_add_u32 v8, {slot*GU_TILE}, v3")
        eops = epi_ops(ACC[(j-1) % 2], j - 1) if j >= 1 else []
        for ks in range(D):
            p(f"ds_read_b128 v[{WR+4*ks}:{WR+3+4*ks}], v8 offset:{ks*1024}")
        ei = 0
        for ks in range(33):
            sl = ks % D
            rem = min(32 - ks, D - 1)
            if j == 0 and ks < 32:
                p(f"s_waitcnt vmcnt({min(vm_wait(f'X{ks}'),63)}) lgkmcnt({rem})")
            else:
                p(f"s_waitcnt lgkmcnt({rem})")
            c = "0" if ks == 0 else f"v[{acc}:{acc+15}]"
            p(f"v_mfma_f32_32x32x16_bf16 v[{acc}:{acc+15}], v[{WR+4*sl}:{WR+3+4*sl}], v[{XB+4*ks}:{XB+3+4*ks}], {c}")
            if ks + D < 33:
                p(f"ds_read_b128 v[{WR+4*sl}:{WR+3+4*sl}], v8 offset:{(ks+D)*1024}")
            if ks >= 3:
                budget = 3
                while ei < len(eops) and budget > 0:
                    op = eops[ei]; ei += 1
                    p(op)
                    if op.startswith("buffer_store"): led.append("ST")
                    budget -= 2 if ("exp" in op or "rcp" in op) else 1
        while ei < len(eops):
            op = eops[ei]; ei += 1
            p(op)
            if op.startswith("buffer_store"): led.append("ST")
    for op in epi_ops(ACC[6 % 2], 6):
        p(op)
    p.label("K5_END")
    p("s_endpgm")
    return p
```

```python
WS_MOD  = 0x000000
WS_ST1  = 0x004000
WS_WKVF = 0x008000
WS_KV   = 0x010000
WS_ST2  = 0x040000
WS_WQF  = 0x080000
WS_WOF  = 0x100000
WS_WDF  = 0x200000
WS_WGUF = 0x400000
WS_QF   = 0x800000
WS_OF   = 0xA00000
WS_X1F  = 0xC00000
WS_ACTF = 0x1000000
WS_SIZE = 0x10000000
GU_TILE = 33 * 1024
LOG2E = 1.4426950408889634
import struct
def f2u(x):
    return struct.unpack("<I", struct.pack("<f", x))[0]
def hx(x):
    return "0x%08x" % f2u(x)
```

```python
import sys
from asmlib import *
from layout import *
import k1, k2, k3, k46, k5

NAME = "adaLN_cond__grouped_kv_mqa__geglu_ffn__prompt"
def build():
    ref = open(f"cdna_kernels/{NAME}.s.ref").read().split("\n")
    head = [l for l in ref if l.startswith(";") and "@launch" not in l and "Override launch" not in l and "grid=ceil" not in l]
    launches = [
        ("k1_prep_kernel", 256, 256, 2048),
        ("k2_qkv_kernel", k2.K2_GRID, 256, k2.K2_LDS),
        ("k3_attn_kernel", 256, 512, k3.K3_LDS),
        ("k4_wo_kernel", 256, 256, 131072),
        ("k5_gu_kernel", 256, 256, k5.K5_LDS),
        ("k6_down_kernel", 256, 256, 131072),
    ]
    out = "\n".join(head) + "\n"
    for n, g, b, l in launches:
        out += f"; @launch kernel={n} grid=({g},1,1) block=({b},1,1) lds={l}\n"
    out += '.amdgcn_target "amdgcn-amd-amdhsa--gfx950"\n'
    out += kernel_text("k1_prep_kernel", k1.build_k1())
    out += kernel_text("k2_qkv_kernel", k2.build_k2())
    out += kernel_text("k3_attn_kernel", k3.build_k3())
    out += kernel_text("k4_wo_kernel", k46.build_gemm22("k4", 32, WS_WOF, WS_OF, "wo"))
    out += kernel_text("k5_gu_kernel", k5.build_k5())
    out += kernel_text("k6_down_kernel", k46.build_gemm22("k6", 112, WS_WDF, WS_ACTF, "down"))
    return out
if __name__ == "__main__":
    dst = sys.argv[1] if len(sys.argv) > 1 else f"cdna_kernels/{NAME}.s"
    open(dst, "w").write(build())
    print("wrote", dst)
```
